```python
import torch

def _softmax(x, axis=-1):
    return torch.softmax(x, dim=axis)

def _gelu(x):
    return torch.nn.functional.gelu(x, approximate='tanh')

def _silu(x):
    return torch.nn.functional.silu(x)

def _sigmoid(x):
    return torch.sigmoid(x)

def _layernorm(x, axis=-1, eps=1e-05):
    m = x.mean(dim=axis, keepdim=True)
    v = x.var(dim=axis, keepdim=True, unbiased=False)
    return (x - m) / torch.sqrt(v + eps)

def _scatter_add(tgt, idx, src, axis=0):
    return tgt.clone().index_add_(axis, idx, src)

def _segment_sum(src, seg, n):
    out = torch.zeros((n,) + src.shape[1:], dtype=src.dtype)
    return out.index_add_(0, seg, src)

def _pad(x, pw):
    flat = tuple((v for pair in reversed(pw) for v in pair))
    return torch.nn.functional.pad(x, flat)
kernel_name = 'standalone__autoregressive_conv_wavernn__speech'

def setup_inputs():

    _w = lambda a: (lambda t: t.to(torch.bfloat16) if t.is_floating_point() else t)(torch.as_tensor(a))
    B, T, D, K = (2, 1000, 512, 15)
    return {'x': _w((lambda *s: torch.randn(*s, dtype=torch.bfloat16) * 0.05)(B, T, D)), 'w': _w((lambda *s: torch.randn(*s, dtype=torch.bfloat16) * 0.05)(K, D, 2 * D))}

def reference(x, w):
    B, T, D = x.shape
    K = w.shape[0]
    dil = 2
    pad = (K - 1) * dil
    xp = _pad(x, ((0, 0), (pad, 0), (0, 0)))
    h = torch.einsum('btd,de->bte', xp[:, 0:T, :], w[0])
    for i in range(1, K):
        h = h + torch.einsum('btd,de->bte', xp[:, i * dil:i * dil + T, :], w[i])
    f, g = (h[..., :D].clone(), h[..., D:].clone())
    return torch.tanh(f) * _sigmoid(g)
```

```python
import sys
NAME="standalone__autoregressive_conv_wavernn__speech_kernel"
HDR = """; Kernarg layout for this problem (40 bytes, ptrs only, base s[0:1]):
"""
RING=30720
ABUF0=4*RING
ABYTES=19*1040+512
ABUF1=ABUF0+ABYTES
LDS_TOTAL=ABUF1+ABYTES
V_BDMA=1; V_ADMA=2; V_BRD=7; V_A=8; V_ASUM=9; V_T=10
V_F=16
V_W=52
V_OWN=64
V_ACC=128
def F(s): return V_F+((s+14)%9)*4
def W(buf,nb): return V_W+buf*8+nb*4
def ACC(r,nb): return V_ACC+(r*2+nb)*16
def vr(b,n): return f"v[{b}:{b+n-1}]"

class E:
    def __init__(s):
        s.L=[]; s.q=[]
    def A(s,x): s.L.append("    "+x)
    def lab(s,x): s.L.append(x+":")
    def vm(s,tag): s.q.append(tag)
    def need(s,tags):
        idx=max(i for i,t in enumerate(s.q) if t in tags)
        return len(s.q)-1-idx

def aoff(s):
    u=2*s+28
    return u*128+(u>>3)*16

def gen():
    e=E(); A=e.A
    e.L.append(HDR+f"; @launch grid=(256,1,1) block=(256,1,1) lds={LDS_TOTAL}")
    e.L.append('.amdgcn_target "amdgcn-amd-amdhsa--gfx950"')
    e.L.append(".text")
    e.L.append(f".globl {NAME}")
    e.L.append(".p2align 8")
    e.L.append(f".type {NAME},@function")
    e.lab(NAME)
    A("s_cmp_ge_u32 s2, 256")
    A("s_cbranch_scc1 L_end")
    A("s_load_dwordx4 s[24:27], s[0:1], 0")
    A("s_load_dwordx2 s[28:29], s[0:1], 16")
    A("s_and_b32 s30, s2, 7")
    A("s_lshr_b32 s31, s2, 3")
    A("s_and_b32 s32, s31, 1")
    A("s_lshl_b32 s30, s30, 1")
    A("s_add_u32 s30, s30, s32")
    A("s_lshl_b32 s30, s30, 6")
    A("s_lshr_b32 s31, s31, 1")
    A("s_lshr_b32 s32, s31, 3")
    A("s_and_b32 s31, s31, 7")
    A("s_lshl_b32 s31, s31, 7")
    A("s_mul_i32 s33, s32, 1024000")
    A("v_lshrrev_b32 v10, 6, v0")
    A("v_and_b32 v0, 63, v0")
    A("s_nop 0")
    A("v_readfirstlane_b32 s16, v10")
    A("s_waitcnt lgkmcnt(0)")
    A("s_add_u32 s4, s24, s33")
    A("s_addc_u32 s5, s25, 0")
    A("s_and_b32 s5, s5, 0xffff")
    A("s_mov_b32 s6, 1024000")
    A("s_mov_b32 s7, 0x20000")
    A("s_mov_b32 s8, s26")
    A("s_and_b32 s9, s27, 0xffff")
    A("s_mov_b32 s10, 15728640")
    A("s_mov_b32 s11, 0x20000")
    A("s_add_u32 s12, s28, s33")
    A("s_addc_u32 s13, s29, 0")
    A("s_and_b32 s13, s13, 0xffff")
    A("s_mov_b32 s14, 1024000")
    A("s_mov_b32 s15, 0x20000")
    A(f"s_mul_i32 s17, s16, {RING}")
    A("v_lshrrev_b32 v10, 2, v0")
    A("v_lshlrev_b32 v10, 11, v10")
    A("v_and_b32 v11, 3, v0")
    A("v_lshlrev_b32 v11, 4, v11")
    A("v_add_u32 v10, v10, v11")
    A("s_lshl_b32 s34, s16, 15")
    A("s_add_u32 s34, s34, s30")
    A(f"v_add_u32 v{V_BDMA}, s34, v10")
    A("v_lshrrev_b32 v10, 3, v0")
    A("v_and_b32 v11, 7, v0")
    A("v_lshlrev_b32 v11, 4, v11")
    A("s_lshl_b32 s34, s16, 3")
    A("s_add_u32 s34, s34, s31")
    A("s_sub_u32 s34, s34, 28")
    A("v_add_u32 v10, s34, v10")
    A("v_mov_b32 v13, 0x80000000")
    for p in range(5):
        A(f"v_add_u32 v12, {32*p}, v10")
        A("v_cmp_gt_i32 vcc, 0, v12")
        A("v_lshlrev_b32 v12, 10, v12")
        A("v_add_u32 v12, v12, v11")
        A(f"v_cndmask_b32 v{V_ADMA+p}, v12, v13, vcc")
    A("s_mov_b32 s22, -1")
    A("s_cmp_eq_u32 s16, 3")
    A("s_cselect_b32 s23, 0, -1")
    A("s_mul_i32 s35, s16, 1040")
    A(f"s_add_u32 s18, s35, {ABUF0}")
    A(f"s_lshl_b32 s36, s35, 1")
    A(f"s_add_u32 s36, s36, {ABUF0+ABUF1}")
    A("s_mov_b32 s20, 0")
    A("s_mov_b32 s21, 0")
    def issue_B(c,i):
        A(f"s_add_u32 m0, s17, {i*2048}")
        A(f"s_add_u32 s37, s20, {i<<20}")
        A(f"buffer_load_dwordx4 v{V_BDMA}, s[8:11], s37 offen lds"); e.vm(("B",c,i))
        A(f"buffer_load_dwordx4 v{V_BDMA}, s[8:11], s37 offen offset:1024 lds"); e.vm(("B",c,i))
    def issue_A(c,p):
        A(f"s_add_u32 m0, s18, {p*4*1040}")
        if p==4: A("s_mov_b64 exec, s[22:23]")
        else: A("s_nop 0")
        A(f"buffer_load_dwordx4 v{V_ADMA+p}, s[4:7], s21 offen lds"); e.vm(("A",c,p))
        if p==4: A("s_mov_b64 exec, -1")
    for i in range(15):
        issue_B(0,i)
        if i<5: issue_A(0,i)
    A("s_mov_b32 s20, 131072")
    A("s_mov_b32 s21, 128")
    A("s_sub_u32 s18, s36, s18")
    A("v_lshrrev_b32 v10, 5, v0")
    A("v_lshlrev_b32 v10, 9, v10")
    A("v_bfe_u32 v11, v0, 2, 2")
    A("v_lshlrev_b32 v11, 6, v11")
    A("v_add_u32 v10, v10, v11")
    A("v_bfe_u32 v11, v0, 4, 1")
    A("v_lshlrev_b32 v11, 5, v11")
    A("v_add_u32 v10, v10, v11")
    A("v_and_b32 v11, 3, v0")
    A("v_lshlrev_b32 v11, 3, v11")
    A("v_add_u32 v10, v10, v11")
    A(f"v_add_u32 v{V_BRD}, s17, v10")
    A("v_bfe_u32 v10, v0, 1, 4")
    A("v_mul_u32_u24 v10, 1040, v10")
    A("v_and_b32 v11, 1, v0")
    A("v_lshlrev_b32 v11, 7, v11")
    A("v_add_u32 v10, v10, v11")
    A("v_lshrrev_b32 v11, 5, v0")
    A("v_lshlrev_b32 v11, 4, v11")
    A("v_add_u32 v10, v10, v11")
    A("s_lshl_b32 s34, s16, 5")
    A(f"s_add_u32 s34, s34, {ABUF0}")
    A(f"v_add_u32 v{V_A}, s34, v10")
    A(f"v_lshlrev_b32 v{V_ASUM}, 1, v{V_A}")
    A(f"v_add_u32 v{V_ASUM}, {ABYTES}, v{V_ASUM}")
    for i in range(128):
        A(f"v_mov_b32 v{V_ACC+i}, 0")
    def read_W(buf,i):
        for nb in range(2):
            for hh in range(2):
                A(f"ds_read_b64_tr_b16 {vr(W(buf,nb)+hh*2,2)}, v{V_BRD} offset:{i*2048+nb*1024+hh*256}")
    def read_F(s):
        A(f"ds_read_b128 {vr(F(s),4)}, v{V_A} offset:{aoff(s)}")
    n=e.need([("A",0,p) for p in range(5)]+[("B",0,0)])
    A(f"s_waitcnt vmcnt({n})")
    A("s_barrier")
    for s in range(-14,-10): read_F(s)
    read_W(0,0)
    A("s_mov_b32 s19, 0")
    def mfma(r,nb,i,buf):
        A(f"v_mfma_f32_32x32x16_bf16 {vr(ACC(r,nb),16)}, {vr(W(buf,nb),4)}, {vr(F(i-14+r),4)}, {vr(ACC(r,nb),16)}")
    def chunk(c,last,buf0):
        buf=buf0
        for i in range(15):
            A("s_waitcnt lgkmcnt(0)")
            mfma(0,0,i,buf)
            if not last:
                issue_B(c+1,i)
            mfma(0,1,i,buf)
            if i<14:
                n=e.need([("B",c,i+1)])
                A(f"s_waitcnt vmcnt({n})")
                read_W(buf^1,i+1)
                read_F(i-10)
                mfma(1,0,i,buf)
                if not last and i<5: issue_A(c+1,i)
                mfma(1,1,i,buf)
            else:
                mfma(1,0,i,buf)
                mfma(1,1,i,buf)
                if not last:
                    n=e.need([("A",c+1,p) for p in range(5)]+[("B",c+1,0)])
                    A(f"s_waitcnt vmcnt({n})")
                    A(f"v_sub_u32 v{V_A}, v{V_ASUM}, v{V_A}")
                    A("s_barrier")
                    for s in range(-14,-10): read_F(s)
                    read_W(buf^1,0)
            mfma(2,0,i,buf)
            mfma(2,1,i,buf)
            mfma(3,0,i,buf)
            mfma(3,1,i,buf)
            buf^=1
        return buf
    e.lab("L_loop")
    b=chunk(0,False,0)
    A("s_add_u32 s20, s20, 131072"); A("s_add_u32 s21, s21, 128"); A("s_sub_u32 s18, s36, s18")
    b=chunk(1,False,b)
    A("s_add_u32 s20, s20, 131072"); A("s_add_u32 s21, s21, 128"); A("s_sub_u32 s18, s36, s18")
    assert b==0
    A("s_add_u32 s19, s19, 1")
    A("s_cmp_lt_u32 s19, 3")
    A("s_cbranch_scc1 L_loop")
    e.q=[(t[0],t[1]+4,t[2]) for t in e.q]
    b=chunk(6,False,0)
    b=chunk(7,True,b)
    A("s_nop 15")
    A("s_barrier")
    A("v_lshlrev_b32 v10, 4, v0")
    for r in range(4):
        A(f"s_cmp_eq_u32 s16, {r}")
        A(f"s_cbranch_scc1 L_own{r}")
        A(f"s_sub_u32 s34, s16, {r+1}")
        A("s_and_b32 s34, s34, 3")
        A("s_lshl_b32 s34, s34, 13")
        A(f"s_add_u32 s34, s34, {r*24576}")
        A("v_add_u32 v11, s34, v10")
        for nb in range(2):
            for g4 in range(4):
                A(f"ds_write_b128 v11, {vr(ACC(r,nb)+g4*4,4)} offset:{(nb*4+g4)*1024}")
        A(f"s_branch L_done{r}")
        e.lab(f"L_own{r}")
        for k in range(32):
            A(f"v_mov_b32 v{V_OWN+k}, v{ACC(r,0)+k}")
        e.lab(f"L_done{r}")
    A("s_waitcnt lgkmcnt(0)")
    A("s_barrier")
    A("s_mul_i32 s34, s16, 24576")
    A("v_add_u32 v11, s34, v10")
    for sg in range(3):
        for k in range(8):
            A(f"ds_read_b128 {vr(128+sg*32+k*4,4)}, v11 offset:{sg*8192+k*1024}")
    A("v_bfe_u32 v12, v0, 1, 4")
    A("v_lshlrev_b32 v12, 3, v12")
    A("v_and_b32 v13, 1, v0")
    A("v_add_u32 v12, v12, v13")
    A("s_lshl_b32 s34, s16, 1")
    A("s_add_u32 s34, s34, s31")
    A("v_add_u32 v12, s34, v12")
    A("v_lshlrev_b32 v12, 10, v12")
    A("v_lshrrev_b32 v13, 5, v0")
    A("v_lshlrev_b32 v13, 3, v13")
    A("v_add_u32 v12, v12, v13")
    A("v_add_u32 v12, s30, v12")
    A("s_mov_b32 s38, 0x4038aa3b")
    A("s_mov_b32 s39, 0xbfb8aa3b")
    A("s_waitcnt lgkmcnt(0)")
    for k in range(32):
        A(f"v_add_f32 v{V_OWN+k}, v{V_OWN+k}, v{128+k}")
        A(f"v_add_f32 v{160+k}, v{160+k}, v{192+k}")
    for k in range(32):
        A(f"v_add_f32 v{V_OWN+k}, v{V_OWN+k}, v{160+k}")
    for k in range(16):
        A(f"v_mul_f32 v{128+k}, s38, v{V_OWN+k}")
        A(f"v_mul_f32 v{144+k}, s39, v{V_OWN+16+k}")
    for k in range(32):
        A(f"v_exp_f32 v{128+k}, v{128+k}")
    A("s_nop 0")
    for k in range(32):
        A(f"v_add_f32 v{128+k}, 1.0, v{128+k}")
    for k in range(32):
        A(f"v_rcp_f32 v{128+k}, v{128+k}")
    A("s_nop 0")
    for k in range(16):
        A(f"v_fma_f32 v{128+k}, -2.0, v{128+k}, 1.0")
    for k in range(16):
        A(f"v_mul_f32 v{128+k}, v{128+k}, v{144+k}")
    for k in range(8):
        A(f"v_cvt_pk_bf16_f32 v{160+k}, v{128+2*k}, v{128+2*k+1}")
    for g4 in range(4):
        A(f"buffer_store_dwordx2 {vr(160+g4*2,2)}, v12, s[12:15], 0 offen offset:{g4*16}")
    e.lab("L_end")
    A("s_endpgm")
    e.L.append('.section .rodata,"a"')
    e.L.append(".p2align 6")
    e.L.append(f".amdhsa_kernel {NAME}")
    for x in ["next_free_vgpr 256","next_free_sgpr 64","accum_offset 256","group_segment_fixed_size 0","kernarg_size 40","user_sgpr_count 2","user_sgpr_kernarg_segment_ptr 1","system_sgpr_workgroup_id_x 1"]:
        e.L.append("  .amdhsa_"+x)
    e.L.append(".end_amdhsa_kernel")
    return "\n".join(e.L)+"\n"
if __name__=="__main__":
    out=sys.argv[1] if len(sys.argv)>1 else "standalone__autoregressive_conv_wavernn__speech.s"
    open(out,"w").write(gen())
```

```python
import sys
NAME="standalone__autoregressive_conv_wavernn__speech_kernel"
HDR = """; Kernarg layout for this problem (40 bytes, ptrs only, base s[0:1]):
"""
STEPS=False
RING=15360
ABUF0=4*RING
ABYTES=18*2064
ABUF1=ABUF0+ABYTES
NONCE_LDS=ABUF1+ABYTES
LDS_TOTAL=NONCE_LDS+16
V_BDMA=1
V_ADMA=2
V_BRD=4
V_A=5; V_ASUM=6
V_NONCE=8
V_T=12
V_PF=16
V_W=20
V_F=32
V_OWN=32
V_ACC=128
def F(s): return V_F+(s+14)*4
def W(buf): return V_W+buf*4
def ACC(r): return V_ACC+r*16
def vr(b,n): return f"v[{b}:{b+n-1}]"

class E:
    def __init__(s):
        s.L=[]; s.q=[]
    def A(s,x): s.L.append("    "+x)
    def lab(s,x): s.L.append(x+":")
    def vm(s,tag): s.q.append(tag)
    def need(s,tags):
        idx=max(i for i,t in enumerate(s.q) if t in tags)
        return len(s.q)-1-idx

def aoff(s):
    u=2*s+28
    return u*128+(u>>4)*16

def gen(stamp=False, pf=True, codepf=True, wpol="", xpol="", PFA=3):
    e=E(); A=e.A
    sc=[0]
    def ST():
        if stamp:
            A(f"s_memrealtime s[{64+2*sc[0]}:{65+2*sc[0]}]"); sc[0]+=1
    e.L.append(HDR+f"; @launch grid=(256,1,1) block=(320,1,1) lds={LDS_TOTAL}")
    e.L.append('.amdgcn_target "amdgcn-amd-amdhsa--gfx950"')
    e.L.append(".text")
    e.L.append(f".globl {NAME}")
    e.L.append(".p2align 8")
    e.L.append(f".type {NAME},@function")
    e.lab(NAME)
    A("s_cmp_ge_u32 s2, 256")
    A("s_cbranch_scc1 L_end")
    A("s_load_dwordx8 s[24:31], s[0:1], 0")
    A("s_load_dwordx2 s[32:33], s[0:1], 32")
    ST()
    A("s_and_b32 s45, s2, 7")
    A("s_lshl_b32 s45, s45, 7")
    A("s_lshr_b32 s44, s2, 3")
    A("s_and_b32 s43, s44, 1")
    A("s_bfe_u32 s47, s44, 0x10001")
    A("s_lshl_b32 s47, s47, 6")
    A("s_add_u32 s47, s47, s45")
    A("s_lshl_b32 s40, s43, 10")
    A("s_add_u32 s40, s40, s47")
    A("s_lshr_b32 s41, s44, 2")
    A("s_lshr_b32 s42, s41, 2")
    A("s_and_b32 s41, s41, 3")
    A("s_lshl_b32 s41, s41, 8")
    A("s_mul_i32 s42, s42, 1024000")
    A("v_lshrrev_b32 v12, 6, v0")
    A("v_and_b32 v0, 63, v0")
    A("s_nop 0")
    A("v_readfirstlane_b32 s16, v12")
    A("s_nop 3")
    A("s_cmp_eq_u32 s16, 4")
    A("s_cbranch_scc1 L_helper")
    A("v_lshrrev_b32 v12, 2, v0")
    A("v_lshlrev_b32 v12, 11, v12")
    A("v_and_b32 v13, 3, v0")
    A("v_lshlrev_b32 v13, 4, v13")
    A("v_add_u32 v12, v12, v13")
    A("s_lshl_b32 s34, s16, 15")
    A("s_add_u32 s34, s34, s40")
    A(f"v_add_u32 v{V_BDMA}, s34, v12")
    A("v_lshrrev_b32 v12, 3, v0")
    A("v_and_b32 v13, 7, v0")
    A("v_lshlrev_b32 v13, 4, v13")
    A("s_lshl_b32 s34, s16, 3")
    A("s_add_u32 s34, s34, s41")
    A("s_sub_u32 s34, s34, 28")
    A("v_add_u32 v12, s34, v12")
    A("v_mov_b32 v15, 0x80000000")
    A("v_cmp_gt_i32 vcc, 0, v12")
    A("v_lshlrev_b32 v14, 10, v12")
    A("v_add_u32 v14, v14, v13")
    A(f"v_cndmask_b32 v{V_ADMA}, v14, v15, vcc")
    A(f"v_add_u32 v{V_ADMA+1}, 0x8000, v14")
    A(f"s_mul_i32 s17, s16, {RING}")
    A("s_lshr_b32 s35, s16, 1")
    A("s_mul_i32 s35, s35, 2064")
    A("s_and_b32 s34, s16, 1")
    A("s_lshl_b32 s34, s34, 10")
    A("s_add_u32 s35, s35, s34")
    A(f"s_add_u32 s18, s35, {ABUF0}")
    A(f"s_lshl_b32 s36, s35, 1")
    A(f"s_add_u32 s36, s36, {ABUF0+ABUF1}")
    A("s_mov_b32 s20, 0")
    A("s_mov_b32 s21, 0")
    A("s_waitcnt lgkmcnt(0)")
    A("s_mov_b32 s8, s26")
    A("s_and_b32 s9, s27, 0xffff")
    A("s_mov_b32 s10, 15728640")
    A("s_mov_b32 s11, 0x20000")
    A("s_add_u32 s4, s24, s42")
    A("s_addc_u32 s5, s25, 0")
    A("s_and_b32 s5, s5, 0xffff")
    A("s_mov_b32 s6, 1024000")
    A("s_mov_b32 s7, 0x20000")
    def issue_B(c,i):
        A(f"s_add_u32 m0, s17, {i*1024}")
        A(f"s_add_u32 s37, s20, {i<<20}")
        A(f"buffer_load_dwordx4 v{V_BDMA}, s[8:11], s37 offen{wpol} lds"); e.vm(("B",c,i))
    def issue_A(c,p):
        A(f"s_add_u32 m0, s18, {p*4128}")
        if p==0:
            A("s_nop 0")
            A(f"buffer_load_dwordx4 v{V_ADMA}, s[4:7], s21 offen{xpol} lds")
        else:
            A(f"s_add_u32 s37, s21, {(p-1)*32768}")
            A(f"buffer_load_dwordx4 v{V_ADMA+1}, s[4:7], s37 offen{xpol} lds")
        e.vm(("A",c,p))
    for i in range(15):
        issue_B(0,i)
        if i<9: issue_A(0,i)
    A("s_mov_b32 s20, 131072")
    A("s_mov_b32 s21, 128")
    A("s_sub_u32 s18, s36, s18")
    A("s_add_u32 s12, s28, s42")
    A("s_addc_u32 s13, s29, 0")
    A("s_and_b32 s13, s13, 0xffff")
    A("s_mov_b32 s14, 1024000")
    A("s_mov_b32 s15, 0x20000")
    A("s_mov_b32 s48, s32")
    A("s_and_b32 s49, s33, 0xffff")
    A("s_mov_b32 s50, 0x1000000")
    A("s_mov_b32 s51, 0x20000")
    A("v_lshrrev_b32 v12, 5, v0")
    A("v_lshlrev_b32 v12, 9, v12")
    A("v_bfe_u32 v13, v0, 2, 2")
    A("v_lshlrev_b32 v13, 6, v13")
    A("v_add_u32 v12, v12, v13")
    A("v_bfe_u32 v13, v0, 4, 1")
    A("v_lshlrev_b32 v13, 5, v13")
    A("v_add_u32 v12, v12, v13")
    A("v_and_b32 v13, 3, v0")
    A("v_lshlrev_b32 v13, 3, v13")
    A("v_add_u32 v12, v12, v13")
    A(f"v_add_u32 v{V_BRD}, s17, v12")
    A("v_bfe_u32 v12, v0, 1, 4")
    A("v_mul_u32_u24 v12, 2064, v12")
    A("v_and_b32 v13, 1, v0")
    A("v_lshlrev_b32 v13, 7, v13")
    A("v_add_u32 v12, v12, v13")
    A("v_lshrrev_b32 v13, 5, v0")
    A("v_lshlrev_b32 v13, 4, v13")
    A("v_add_u32 v12, v12, v13")
    A("s_lshl_b32 s34, s16, 5")
    A(f"s_add_u32 s34, s34, {ABUF0}")
    A(f"v_add_u32 v{V_A}, s34, v12")
    A(f"v_lshlrev_b32 v{V_ASUM}, 1, v{V_A}")
    A(f"v_add_u32 v{V_ASUM}, {ABYTES}, v{V_ASUM}")
    for i in range(128):
        A(f"v_mov_b32 v{V_ACC+i}, 0")
    def read_W(buf,i):
        for hh in range(2):
            A(f"ds_read_b64_tr_b16 {vr(W(buf)+hh*2,2)}, v{V_BRD} offset:{i*1024+hh*256}")
    def read_F(s):
        A(f"ds_read_b128 {vr(F(s),4)}, v{V_A} offset:{aoff(s)}")
    n=e.need([("A",0,p) for p in range(9)]+[("B",0,0)])
    A(f"s_waitcnt vmcnt({n})")
    A("s_barrier")
    ST()
    if stamp: A("s_memtime s[84:85]"); A("s_memtime s[88:89]"); A("s_memtime s[94:95]")
    read_W(0,0)
    for s in range(-14,-6): read_F(s)
    A("s_mov_b32 s19, 0")
    def mfma(r,i,buf):
        A(f"v_mfma_f32_32x32x16_bf16 {vr(ACC(r),16)}, {vr(W(buf),4)}, {vr(F(i-14+r),4)}, {vr(ACC(r),16)}")
    e.lab("L_loop")
    c=0
    for i in range(15):
        buf=i%3; nbuf=(i+1)%3
        A("s_waitcnt lgkmcnt(0)")
        if stamp and STEPS:
            A("s_cmp_lg_u32 s19, 0")
            A(f"s_cbranch_scc1 L_ss{i}")
            A(f"s_mov_b64 exec, {1<<i}" if i<6 else f"s_lshl_b64 exec, 1, {i}")
            A("v_mov_b32 v19, s94")
            A("s_mov_b64 exec, -1")
            A("s_memtime s[94:95]")
            A("s_nop 3")
            e.lab(f"L_ss{i}")
        if stamp and i==0: A("s_lshl_b64 exec, 1, s19"); A("v_mov_b32 v18, s88"); A("s_mov_b64 exec, -1"); A("s_nop 3")
        mfma(0,i,buf)
        issue_B(c+1,i)
        mfma(1,i,buf)
        if i<14:
            n=e.need([("B",c,i+1)])
            A(f"s_waitcnt vmcnt({n})")
            read_W(nbuf,i+1)
            mfma(2,i,buf)
            read_F(i-6)
            mfma(3,i,buf)
            if i<9: issue_A(c+1,i)
            mfma(4,i,buf)
            mfma(5,i,buf)
            mfma(6,i,buf)
            mfma(7,i,buf)
        else:
            n=e.need([("A",c+1,p) for p in range(9)]+[("B",c+1,0)])
            A(f"s_waitcnt vmcnt({n})")
            A(f"v_sub_u32 v{V_A}, v{V_ASUM}, v{V_A}")
            A("s_barrier")
            read_W(nbuf,0)
            mfma(2,i,buf)
            read_F(-14); read_F(-13)
            mfma(3,i,buf)
            read_F(-12); read_F(-11)
            mfma(4,i,buf)
            read_F(-10); read_F(-9)
            mfma(5,i,buf)
            read_F(-8); read_F(-7)
            mfma(6,i,buf)
            A("s_add_u32 s19, s19, 1")
            A("s_add_u32 s20, s20, 131072")
            A("s_add_u32 s21, s21, 128")
            A("s_sub_u32 s18, s36, s18")
            A("s_cmp_ge_u32 s19, 7")
            A("s_cselect_b32 s20, 0x40000000, s20")
            A("s_cselect_b32 s21, 0x40000000, s21")
            A("s_cmp_lt_u32 s19, 8")
            mfma(7,i,buf)
            if stamp: A("s_memtime s[88:89]")
    A("s_cbranch_scc1 L_loop")
    ST()
    if stamp: A("s_memtime s[86:87]")
    A("s_waitcnt vmcnt(0) lgkmcnt(0)")
    if stamp: A("s_lshl_b64 exec, 1, s19"); A("v_mov_b32 v18, s88"); A("s_mov_b64 exec, -1"); A("s_nop 3")
    A("s_nop 7")
    A("s_barrier")
    A("v_lshlrev_b32 v12, 4, v0")
    for r in range(4):
        A(f"s_cmp_eq_u32 s16, {r}")
        A(f"s_cbranch_scc1 L_own{r}")
        A(f"s_sub_u32 s34, s16, {r+1}")
        A("s_and_b32 s34, s34, 3")
        A("s_lshl_b32 s34, s34, 13")
        A(f"s_add_u32 s34, s34, {r*24576}")
        A("v_add_u32 v13, s34, v12")
        for k in range(8):
            A(f"ds_write_b128 v13, {vr(ACC(2*r)+k*4,4)} offset:{k*1024}")
        A(f"s_branch L_done{r}")
        e.lab(f"L_own{r}")
        for k in range(32):
            A(f"v_mov_b32 v{V_OWN+k}, v{ACC(2*r)+k}")
        e.lab(f"L_done{r}")
    A("s_waitcnt lgkmcnt(0)")
    A("s_barrier")
    A("s_mul_i32 s34, s16, 24576")
    A("v_add_u32 v13, s34, v12")
    for sg in range(3):
        for k in range(8):
            A(f"ds_read_b128 {vr(128+sg*32+k*4,4)}, v13 offset:{sg*8192+k*1024}")
    A(f"v_mov_b32 v13, {NONCE_LDS}")
    A(f"ds_read_b64 {vr(V_NONCE,2)}, v13")
    A("s_mov_b32 s38, 0x4038aa3b")
    A("s_mov_b32 s39, 0xbfb8aa3b")
    A("s_cmp_eq_u32 s43, 0")
    A("s_cselect_b32 s38, s38, s39")
    A("s_cselect_b32 s39, -2.0, 1.0")
    A("s_cselect_b32 s46, 1.0, 0")
    A("v_mov_b32 v14, s46")
    A("s_waitcnt lgkmcnt(0)")
    for k in range(32):
        A(f"v_add_f32 v{V_OWN+k}, v{V_OWN+k}, v{128+k}")
        A(f"v_add_f32 v{160+k}, v{160+k}, v{192+k}")
    for k in range(32):
        A(f"v_add_f32 v{V_OWN+k}, v{V_OWN+k}, v{160+k}")
    for k in range(32):
        A(f"v_mul_f32 v{128+k}, s38, v{V_OWN+k}")
    for k in range(32):
        A(f"v_exp_f32 v{128+k}, v{128+k}")
    A("s_nop 0")
    for k in range(32):
        A(f"v_add_f32 v{128+k}, 1.0, v{128+k}")
    for k in range(32):
        A(f"v_rcp_f32 v{128+k}, v{128+k}")
    A("s_nop 0")
    for k in range(32):
        A(f"v_fma_f32 v{128+k}, s39, v{128+k}, v14")
    ST()
    A("s_lshr_b32 s34, s16, 1")
    A("s_cmp_lg_u32 s34, s43")
    A("s_cbranch_scc1 L_recv")
    for k in range(16):
        A(f"v_cvt_pk_bf16_f32 v{160+k}, v{128+2*k}, v{128+2*k+1}")
    A("s_lshl_b32 s34, s2, 2")
    A("s_add_u32 s34, s34, s16")
    A("s_lshl_b32 s34, s34, 13")
    for k in range(4):
        A(f"buffer_store_dwordx4 {vr(160+4*k,4)}, v12, s[48:51], s34 offen offset:{k*1024} sc0 sc1")
    A("v_mov_b32 v13, 4096")
    A("s_waitcnt vmcnt(0)")
    A("s_mov_b64 exec, 1")
    A(f"buffer_store_dwordx2 {vr(V_NONCE,2)}, v13, s[48:51], s34 offen sc0 sc1")
    A("s_mov_b64 exec, -1")
    A("s_branch L_fin")
    e.lab("L_recv")
    A("s_xor_b32 s34, s2, 8")
    A("s_lshl_b32 s34, s34, 2")
    A("s_add_u32 s34, s34, s16")
    A("s_lshl_b32 s34, s34, 13")
    A("v_mov_b32 v13, 4096")
    A("s_mov_b32 s35, 0")
    e.lab("L_poll")
    A(f"buffer_load_dwordx2 v[160:161], v13, s[48:51], s34 offen sc0 sc1")
    A("s_add_u32 s35, s35, 1")
    A("s_waitcnt vmcnt(0)")
    A(f"v_cmp_eq_u64 vcc, v[160:161], {vr(V_NONCE,2)}")
    A("s_cmp_gt_u32 s35, 0x40000")
    A("s_cbranch_scc1 L_got")
    A("s_cbranch_vccz L_poll")
    e.lab("L_got")
    for k in range(4):
        A(f"buffer_load_dwordx4 {vr(160+4*k,4)}, v12, s[48:51], s34 offen offset:{k*1024} sc0 sc1")
    A("v_bfe_u32 v14, v0, 1, 4")
    A("v_lshlrev_b32 v14, 4, v14")
    A("v_and_b32 v13, 1, v0")
    A("v_add_u32 v14, v14, v13")
    A("s_lshl_b32 s34, s16, 2")
    A("s_add_u32 s34, s34, s41")
    A("v_add_u32 v14, s34, v14")
    A("v_lshlrev_b32 v14, 10, v14")
    A("v_lshrrev_b32 v13, 5, v0")
    A("v_lshlrev_b32 v13, 3, v13")
    A("v_add_u32 v14, v14, v13")
    A("v_add_u32 v14, s47, v14")
    A("s_waitcnt vmcnt(0)")
    for k in range(16):
        A(f"v_lshlrev_b32 v{192+2*k}, 16, v{160+k}")
        A(f"v_and_b32 v{192+2*k+1}, 0xffff0000, v{160+k}")
    for k in range(32):
        A(f"v_mul_f32 v{128+k}, v{128+k}, v{192+k}")
    for k in range(16):
        A(f"v_cvt_pk_bf16_f32 v{160+k}, v{128+2*k}, v{128+2*k+1}")
    for rr in range(2):
        for g4 in range(4):
            A(f"buffer_store_dwordx2 {vr(160+(rr*4+g4)*2,2)}, v14, s[12:15], 0 offen offset:{rr*2048+g4*16}")
    e.lab("L_fin")
    if stamp:
        A("s_waitcnt vmcnt(0)")
        ST()
        A("s_waitcnt lgkmcnt(0)")
        A("s_lshl_b32 s34, s2, 2"); A("s_add_u32 s34, s34, s16"); A("s_lshl_b32 s34, s34, 7")
        A("s_add_u32 s34, s34, 0x800000")
        A("v_mov_b32 v12, s34")
        for k in range(4): A(f"s_mov_b32 s{64+2*sc[0]+k}, s{84+k}")
        sc[0]+=2
        for k in range(2*sc[0]):
            A(f"v_mov_b32 v{128+k}, s{64+k}")
        A("v_lshlrev_b32 v13, 2, v0")
        A("v_add_u32 v13, s34, v13")
        A("v_cmp_gt_u32 vcc, 9, v0")
        A("s_and_saveexec_b64 s[90:91], vcc")
        A("buffer_store_dword v18, v13, s[48:51], 0 offen offset:64")
        if STEPS:
            A("s_mov_b64 exec, 0x7fff")
            A("v_add_u32 v13, 0x100000, v13")
            A("buffer_store_dword v19, v13, s[48:51], 0 offen")
        A("s_mov_b64 exec, 1")
        for k in range(sc[0]):
            A(f"buffer_store_dwordx2 v[{128+2*k}:{129+2*k}], v12, s[48:51], 0 offen offset:{8*k}")
    A("s_endpgm")
    e.lab("L_helper")
    A("s_memrealtime s[56:57]")
    A("s_lshl_b32 s34, s44, 6")
    A("v_add_u32 v12, s34, v0")
    A("v_lshrrev_b32 v13, 7, v12")
    A("v_lshlrev_b32 v13, 20, v13")
    A("v_bfe_u32 v14, v12, 1, 6")
    A("v_lshlrev_b32 v14, 11, v14")
    A("v_add_u32 v13, v13, v14")
    A("v_and_b32 v14, 1, v12")
    A("v_lshlrev_b32 v14, 10, v14")
    A("v_add_u32 v13, v13, v14")
    A("v_add_u32 v13, s45, v13")
    A("v_lshlrev_b32 v14, 10, v12")
    A("s_waitcnt lgkmcnt(0)")
    A("s_mov_b32 s8, s26")
    A("s_and_b32 s9, s27, 0xffff")
    A("s_mov_b32 s10, 15728640")
    A("s_mov_b32 s11, 0x20000")
    A("s_mov_b32 s4, s24")
    A("s_and_b32 s5, s25, 0xffff")
    A("s_mov_b32 s6, 2048000")
    A("s_mov_b32 s7, 0x20000")
    A("s_mov_b32 s52, s30")
    A("s_and_b32 s53, s31, 0xffff")
    A("s_mov_b32 s54, 256")
    A("s_mov_b32 s55, 0x20000")
    A("s_or_b32 s58, s56, 1")
    A("s_mov_b32 s59, s57")
    A(f"v_mov_b32 v{V_NONCE}, s58")
    A(f"v_mov_b32 v{V_NONCE+1}, s59")
    A(f"v_mov_b32 v{V_NONCE+2}, 0")
    A(f"v_mov_b32 v{V_NONCE+3}, 0")
    A("v_mov_b32 v12, 0")
    A("s_mov_b64 exec, 1")
    A(f"buffer_atomic_cmpswap_x2 {vr(V_NONCE,4)}, v12, s[52:55], 0 offen sc0")
    A("s_mov_b64 exec, -1")
    def PF(c):
        if pf and c<=7:
            A(f"s_mov_b32 s34, {c*131072}")
            A(f"buffer_load_dword v{V_PF}, v13, s[8:11], s34 offen")
            A(f"s_mov_b32 s34, {c*128}")
            A(f"buffer_load_dword v{V_PF}, v14, s[4:7], s34 offen")
    for c in range(1,PFA): PF(c)
    if codepf:
        A("s_cmp_ge_u32 s44, 1")
        A("s_cbranch_scc1 L_nocpf")
        A("s_getpc_b64 s[92:93]")
        e.lab("L_pcbase")
        A(f"s_sub_u32 s92, s92, L_pcbase-{NAME}")
        A("s_subb_u32 s93, s93, 0")
        A("v_lshlrev_b32 v12, 7, v0")
        A(f"v_min_u32 v12, L_end-{NAME}, v12")
        A(f"global_load_dword v{V_PF+1}, v12, s[92:93]")
        e.lab("L_nocpf")
    A("s_barrier")
    for k in range(8):
        if k==6:
            A(f"s_waitcnt vmcnt(0)")
            A(f"v_or_b32 v12, v{V_NONCE}, v{V_NONCE+1}")
            A("v_cmp_eq_u32 vcc, 0, v12")
            A("v_mov_b32 v12, s58")
            A("v_mov_b32 v15, s59")
            A(f"v_cndmask_b32 v{V_NONCE}, v{V_NONCE}, v12, vcc")
            A(f"v_cndmask_b32 v{V_NONCE+1}, v{V_NONCE+1}, v15, vcc")
            A(f"v_mov_b32 v12, {NONCE_LDS}")
            A("s_mov_b64 exec, 1")
            A(f"ds_write_b64 v12, {vr(V_NONCE,2)}")
            A("s_mov_b64 exec, -1")
            A("s_waitcnt lgkmcnt(0)")
        PF(k+PFA)
        A("s_barrier")
    e.lab("L_end")
    A("s_endpgm")
    e.L.append('.section .rodata,"a"')
    e.L.append(".p2align 6")
    e.L.append(f".amdhsa_kernel {NAME}")
    for x in ["next_free_vgpr 256","next_free_sgpr 100","accum_offset 256","group_segment_fixed_size 0","kernarg_size 40","user_sgpr_count 2","user_sgpr_kernarg_segment_ptr 1","system_sgpr_workgroup_id_x 1"]:
        e.L.append("  .amdhsa_"+x)
    e.L.append(".end_amdhsa_kernel")
    return "\n".join(e.L)+"\n"
if __name__=="__main__":
    import argparse
    ap=argparse.ArgumentParser()
    ap.add_argument("out",nargs="?",default="standalone__autoregressive_conv_wavernn__speech.s")
    ap.add_argument("--stamp",action="store_true")
    ap.add_argument("--nopf",action="store_true")
    ap.add_argument("--nocodepf",action="store_true")
    ap.add_argument("--wpol",default="")
    ap.add_argument("--pfa",type=int,default=3)
    ap.add_argument("--xpol",default="")
    ap.add_argument("--steps",action="store_true")
    a=ap.parse_args()
    STEPS=a.steps
    open(a.out,"w").write(gen(stamp=a.stamp,pf=not a.nopf,codepf=not a.nocodepf,PFA=a.pfa,wpol=(" "+a.wpol if a.wpol else ""),xpol=(" "+a.xpol if a.xpol else "")))
```

```python
import sys
NAME="standalone__autoregressive_conv_wavernn__speech_kernel"
HDR = """; Kernarg layout for this problem (40 bytes, ptrs only, base s[0:1]):
"""
RING=30720
ABUF0=4*RING
ABYTES=19*1040+512
ABUF1=ABUF0+ABYTES
NONCE_LDS=ABUF1+ABYTES
LDS_TOTAL=NONCE_LDS+16
V_BDMA=1
V_ADMA=3
V_BRD=8
V_A=10; V_ASUM=11
V_T=12
V_F=16
V_W=52
V_NONCE=76
V_PF=80
V_OWN=84
V_ACC=128
def F(s): return V_F+((s+14)%9)*4
def W(buf,nb): return V_W+buf*8+nb*4
def ACC(r,nb): return V_ACC+(r*2+nb)*16
def vr(b,n): return f"v[{b}:{b+n-1}]"

class E:
    def __init__(s):
        s.L=[]; s.q=[]
    def A(s,x): s.L.append("    "+x)
    def lab(s,x): s.L.append(x+":")
    def vm(s,tag): s.q.append(tag)
    def need(s,tags):
        idx=max(i for i,t in enumerate(s.q) if t in tags)
        return len(s.q)-1-idx

def aoff(s):
    u=2*s+28
    return u*128+(u>>3)*16

def gen(stamp=False, pf=True, codepf=True):
    e=E(); A=e.A
    sc=[0]
    def ST():
        if stamp:
            A(f"s_memrealtime s[{64+2*sc[0]}:{65+2*sc[0]}]"); sc[0]+=1
    e.L.append(HDR+f"; @launch grid=(256,1,1) block=(256,1,1) lds={LDS_TOTAL}")
    e.L.append('.amdgcn_target "amdgcn-amd-amdhsa--gfx950"')
    e.L.append(".text")
    e.L.append(f".globl {NAME}")
    e.L.append(".p2align 8")
    e.L.append(f".type {NAME},@function")
    e.lab(NAME)
    A("s_cmp_ge_u32 s2, 256")
    A("s_cbranch_scc1 L_end")
    A("s_load_dwordx8 s[24:31], s[0:1], 0")
    A("s_load_dwordx2 s[32:33], s[0:1], 32")
    ST()
    A("s_and_b32 s45, s2, 7")
    A("s_lshl_b32 s45, s45, 7")
    A("s_lshr_b32 s44, s2, 3")
    A("s_and_b32 s43, s44, 1")
    A("s_lshl_b32 s40, s43, 10")
    A("s_add_u32 s40, s40, s45")
    A("s_lshr_b32 s41, s44, 1")
    A("s_lshr_b32 s42, s41, 3")
    A("s_and_b32 s41, s41, 7")
    A("s_lshl_b32 s41, s41, 7")
    A("s_mul_i32 s42, s42, 1024000")
    A("v_lshrrev_b32 v12, 6, v0")
    A("v_and_b32 v0, 63, v0")
    A("s_nop 0")
    A("v_readfirstlane_b32 s16, v12")
    A("v_lshrrev_b32 v12, 3, v0")
    A("v_lshlrev_b32 v12, 11, v12")
    A("v_and_b32 v13, 7, v0")
    A("v_bfe_u32 v14, v0, 4, 1")
    A("v_lshlrev_b32 v14, 2, v14")
    A("v_xor_b32 v13, v13, v14")
    A("v_lshlrev_b32 v13, 4, v13")
    A("v_add_u32 v12, v12, v13")
    A("s_lshl_b32 s34, s16, 15")
    A("s_add_u32 s34, s34, s40")
    A(f"v_add_u32 v{V_BDMA}, s34, v12")
    A(f"v_add_u32 v{V_BDMA+1}, {16384-1024}, v{V_BDMA}")
    A("v_lshrrev_b32 v12, 3, v0")
    A("v_and_b32 v13, 7, v0")
    A("v_lshlrev_b32 v13, 4, v13")
    A("s_lshl_b32 s34, s16, 3")
    A("s_add_u32 s34, s34, s41")
    A("s_sub_u32 s34, s34, 28")
    A("v_add_u32 v12, s34, v12")
    A("v_mov_b32 v15, 0x80000000")
    for p in range(5):
        A(f"v_add_u32 v14, {32*p}, v12")
        A("v_cmp_gt_i32 vcc, 0, v14")
        A("v_lshlrev_b32 v14, 10, v14")
        A("v_add_u32 v14, v14, v13")
        A(f"v_cndmask_b32 v{V_ADMA+p}, v14, v15, vcc")
    A("s_mov_b32 s22, -1")
    A("s_cmp_eq_u32 s16, 3")
    A("s_cselect_b32 s23, 0, -1")
    A(f"s_mul_i32 s17, s16, {RING}")
    A("s_mul_i32 s35, s16, 1040")
    A(f"s_add_u32 s18, s35, {ABUF0}")
    A(f"s_lshl_b32 s36, s35, 1")
    A(f"s_add_u32 s36, s36, {ABUF0+ABUF1}")
    A("s_mov_b32 s20, 0")
    A("s_mov_b32 s21, 0")
    A("s_waitcnt lgkmcnt(0)")
    A("s_mov_b32 s8, s26")
    A("s_and_b32 s9, s27, 0xffff")
    A("s_mov_b32 s10, 15728640")
    A("s_mov_b32 s11, 0x20000")
    A("s_add_u32 s4, s24, s42")
    A("s_addc_u32 s5, s25, 0")
    A("s_and_b32 s5, s5, 0xffff")
    A("s_mov_b32 s6, 1024000")
    A("s_mov_b32 s7, 0x20000")
    def issue_B(c,i):
        A(f"s_add_u32 m0, s17, {i*2048}")
        A(f"s_add_u32 s37, s20, {i<<20}")
        A(f"buffer_load_dwordx4 v{V_BDMA}, s[8:11], s37 offen lds"); e.vm(("B",c,i))
        A(f"buffer_load_dwordx4 v{V_BDMA+1}, s[8:11], s37 offen offset:1024 lds"); e.vm(("B",c,i))
    def issue_A(c,p):
        A(f"s_add_u32 m0, s18, {p*4*1040}")
        if p==4: A("s_mov_b64 exec, s[22:23]")
        else: A("s_nop 0")
        A(f"buffer_load_dwordx4 v{V_ADMA+p}, s[4:7], s21 offen lds"); e.vm(("A",c,p))
        if p==4: A("s_mov_b64 exec, -1")
    for i in range(15):
        issue_B(0,i)
        if i<5: issue_A(0,i)
    A("s_mov_b32 s20, 131072")
    A("s_mov_b32 s21, 128")
    A("s_sub_u32 s18, s36, s18")
    A("s_add_u32 s12, s28, s42")
    A("s_addc_u32 s13, s29, 0")
    A("s_and_b32 s13, s13, 0xffff")
    A("s_mov_b32 s14, 1024000")
    A("s_mov_b32 s15, 0x20000")
    A("s_mov_b32 s48, s32")
    A("s_and_b32 s49, s33, 0xffff")
    A("s_mov_b32 s50, 0x1000000")
    A("s_mov_b32 s51, 0x20000")
    if codepf:
        A("s_cmp_lg_u32 s16, 3")
        A("s_cbranch_scc1 L_nocpf")
        A("s_cmp_ge_u32 s44, 1")
        A("s_cbranch_scc1 L_nocpf")
        A("s_getpc_b64 s[92:93]")
        e.lab("L_pcbase")
        A("v_lshlrev_b32 v12, 7, v0")
        A("v_min_u32 v12, L_end-L_pcbase, v12")
        A(f"global_load_dword v{V_PF+1}, v12, s[92:93]")
        e.lab("L_nocpf")
    if pf:
        A("s_lshl_b32 s34, s44, 6")
        A("v_add_u32 v12, s34, v0")
        A("v_lshrrev_b32 v13, 7, v12")
        A("v_lshlrev_b32 v13, 20, v13")
        A("v_bfe_u32 v14, v12, 1, 6")
        A("v_lshlrev_b32 v14, 11, v14")
        A("v_add_u32 v13, v13, v14")
        A("v_and_b32 v14, 1, v12")
        A("v_lshlrev_b32 v14, 10, v14")
        A("v_add_u32 v13, v13, v14")
        A("v_add_u32 v13, s45, v13")
        A("v_lshlrev_b32 v14, 10, v12")
        A("s_and_b32 s34, s16, 1")
        A("s_mov_b32 s62, 15728640")
        A("s_mov_b32 s35, 131072")
        A("s_cmp_eq_u32 s34, 1")
        A("s_cselect_b64 vcc, -1, 0")
        A("s_cselect_b32 s60, s24, s26")
        A("s_cselect_b32 s61, s25, s27")
        A("s_cselect_b32 s62, 2048000, s62")
        A("s_cselect_b32 s35, 128, s35")
        A("s_and_b32 s61, s61, 0xffff")
        A("s_mov_b32 s63, 0x20000")
        A("v_cndmask_b32 v13, v13, v14, vcc")
        A("s_lshr_b32 s34, s16, 1")
        A("s_add_u32 s34, s34, 1")
        A("s_mul_i32 s34, s34, s35")
        A("s_lshl_b32 s35, s35, 1")
        for k in range(4):
            if k==3:
                A("s_cmp_ge_u32 s16, 2")
                A("s_cselect_b32 s34, 0x40000000, s34")
            A(f"buffer_load_dword v{V_PF}, v13, s[60:63], s34 offen")
            A("s_add_u32 s34, s34, s35")
    A("s_cmp_lg_u32 s16, 0")
    A("s_cbranch_scc1 L_nononce")
    A("s_memrealtime s[56:57]")
    A("s_mov_b32 s52, s30")
    A("s_and_b32 s53, s31, 0xffff")
    A("s_mov_b32 s54, 256")
    A("s_mov_b32 s55, 0x20000")
    A("s_waitcnt lgkmcnt(0)")
    A("s_or_b32 s58, s56, 1")
    A("s_mov_b32 s59, s57")
    A(f"v_mov_b32 v{V_NONCE}, s58")
    A(f"v_mov_b32 v{V_NONCE+1}, s59")
    A(f"v_mov_b32 v{V_NONCE+2}, 0")
    A(f"v_mov_b32 v{V_NONCE+3}, 0")
    A("v_mov_b32 v12, 0")
    A("s_mov_b64 exec, 1")
    A(f"buffer_atomic_cmpswap_x2 {vr(V_NONCE,4)}, v12, s[52:55], 0 offen sc0")
    A("s_mov_b64 exec, -1")
    e.lab("L_nononce")
    A("v_lshrrev_b32 v12, 5, v0")
    A("v_lshlrev_b32 v12, 10, v12")
    A("v_bfe_u32 v13, v0, 2, 2")
    A("v_lshlrev_b32 v13, 7, v13")
    A("v_add_u32 v12, v12, v13")
    A("v_bfe_u32 v13, v0, 4, 1")
    A("v_lshlrev_b32 v13, 5, v13")
    A("v_add_u32 v12, v12, v13")
    A("v_and_b32 v13, 3, v0")
    A("v_lshlrev_b32 v13, 3, v13")
    A("v_add_u32 v12, v12, v13")
    A("v_add_u32 v12, s17, v12")
    A("v_bfe_u32 v13, v0, 3, 1")
    A("v_lshlrev_b32 v13, 6, v13")
    A(f"v_add_u32 v{V_BRD}, v12, v13")
    A("v_xor_b32 v13, 64, v13")
    A(f"v_add_u32 v{V_BRD+1}, v12, v13")
    A("v_bfe_u32 v12, v0, 1, 4")
    A("v_mul_u32_u24 v12, 1040, v12")
    A("v_and_b32 v13, 1, v0")
    A("v_lshlrev_b32 v13, 7, v13")
    A("v_add_u32 v12, v12, v13")
    A("v_lshrrev_b32 v13, 5, v0")
    A("v_lshlrev_b32 v13, 4, v13")
    A("v_add_u32 v12, v12, v13")
    A("s_lshl_b32 s34, s16, 5")
    A(f"s_add_u32 s34, s34, {ABUF0}")
    A(f"v_add_u32 v{V_A}, s34, v12")
    A(f"v_lshlrev_b32 v{V_ASUM}, 1, v{V_A}")
    A(f"v_add_u32 v{V_ASUM}, {ABYTES}, v{V_ASUM}")
    for i in range(128):
        A(f"v_mov_b32 v{V_ACC+i}, 0")
    def read_W(buf,i):
        for nb in range(2):
            for hh in range(2):
                A(f"ds_read_b64_tr_b16 {vr(W(buf,nb)+hh*2,2)}, v{V_BRD+nb} offset:{i*2048+hh*512}")
    def read_F(s):
        A(f"ds_read_b128 {vr(F(s),4)}, v{V_A} offset:{aoff(s)}")
    n=e.need([("A",0,p) for p in range(5)]+[("B",0,0)])
    A(f"s_waitcnt vmcnt({n})")
    A("s_barrier")
    ST()
    if stamp: A("s_memtime s[84:85]")
    for s in range(-14,-10): read_F(s)
    read_W(0,0)
    A("s_mov_b32 s19, 0")
    def mfma(r,nb,i,buf):
        A(f"v_mfma_f32_32x32x16_bf16 {vr(ACC(r,nb),16)}, {vr(W(buf,nb),4)}, {vr(F(i-14+r),4)}, {vr(ACC(r,nb),16)}")
    e.lab("L_loop")
    c=0
    for i in range(15):
        buf=i%3; nbuf=(i+1)%3
        A("s_waitcnt lgkmcnt(0)")
        mfma(0,0,i,buf)
        issue_B(c+1,i)
        mfma(0,1,i,buf)
        if i<14:
            n=e.need([("B",c,i+1)])
            A(f"s_waitcnt vmcnt({n})")
            read_W(nbuf,i+1)
            read_F(i-10)
            mfma(1,0,i,buf)
            if i<5: issue_A(c+1,i)
            mfma(1,1,i,buf)
        else:
            mfma(1,0,i,buf)
            mfma(1,1,i,buf)
            n=e.need([("A",c+1,p) for p in range(5)]+[("B",c+1,0)])
            A(f"s_waitcnt vmcnt({n})")
            A(f"v_sub_u32 v{V_A}, v{V_ASUM}, v{V_A}")
            A("s_barrier")
            for s in range(-14,-10): read_F(s)
            read_W(nbuf,0)
        mfma(2,0,i,buf)
        if i==14:
            A("s_add_u32 s19, s19, 1")
            A("s_add_u32 s20, s20, 131072")
            A("s_add_u32 s21, s21, 128")
            A("s_sub_u32 s18, s36, s18")
            A("s_cmp_ge_u32 s19, 7")
            A("s_cselect_b32 s20, 0x40000000, s20")
            A("s_cselect_b32 s21, 0x40000000, s21")
        mfma(2,1,i,buf)
        mfma(3,0,i,buf)
        if i==14:
            A("s_cmp_lt_u32 s19, 8")
        mfma(3,1,i,buf)
    A("s_cbranch_scc1 L_loop")
    ST()
    if stamp: A("s_memtime s[86:87]")
    A("s_waitcnt vmcnt(0) lgkmcnt(0)")
    A("s_nop 7")
    A("s_barrier")
    A("v_lshlrev_b32 v12, 4, v0")
    for r in range(4):
        A(f"s_cmp_eq_u32 s16, {r}")
        A(f"s_cbranch_scc1 L_own{r}")
        A(f"s_sub_u32 s34, s16, {r+1}")
        A("s_and_b32 s34, s34, 3")
        A("s_lshl_b32 s34, s34, 13")
        A(f"s_add_u32 s34, s34, {r*24576}")
        A("v_add_u32 v13, s34, v12")
        for nb in range(2):
            for g4 in range(4):
                A(f"ds_write_b128 v13, {vr(ACC(r,nb)+g4*4,4)} offset:{(nb*4+g4)*1024}")
        A(f"s_branch L_done{r}")
        e.lab(f"L_own{r}")
        for k in range(32):
            A(f"v_mov_b32 v{V_OWN+k}, v{ACC(r,0)+k}")
        if r==0:
            A(f"v_or_b32 v13, v{V_NONCE}, v{V_NONCE+1}")
            A("v_cmp_eq_u32 vcc, 0, v13")
            A("v_mov_b32 v13, s58")
            A("v_mov_b32 v14, s59")
            A(f"v_cndmask_b32 v{V_NONCE}, v{V_NONCE}, v13, vcc")
            A(f"v_cndmask_b32 v{V_NONCE+1}, v{V_NONCE+1}, v14, vcc")
            A(f"v_mov_b32 v13, {NONCE_LDS}")
            A("s_mov_b64 exec, 1")
            A(f"ds_write_b64 v13, {vr(V_NONCE,2)}")
            A("s_mov_b64 exec, -1")
        e.lab(f"L_done{r}")
    A("s_waitcnt lgkmcnt(0)")
    A("s_barrier")
    A("s_mul_i32 s34, s16, 24576")
    A("v_add_u32 v13, s34, v12")
    for sg in range(3):
        for k in range(8):
            A(f"ds_read_b128 {vr(128+sg*32+k*4,4)}, v13 offset:{sg*8192+k*1024}")
    A(f"v_mov_b32 v13, {NONCE_LDS}")
    A(f"ds_read_b64 {vr(V_NONCE,2)}, v13")
    A("s_mov_b32 s38, 0x4038aa3b")
    A("s_mov_b32 s39, 0xbfb8aa3b")
    A("s_cmp_eq_u32 s43, 0")
    A("s_cselect_b32 s38, s38, s39")
    A("s_cselect_b32 s39, -2.0, 1.0")
    A("s_cselect_b32 s46, 1.0, 0")
    A("v_mov_b32 v14, s46")
    A("s_waitcnt lgkmcnt(0)")
    for k in range(32):
        A(f"v_add_f32 v{V_OWN+k}, v{V_OWN+k}, v{128+k}")
        A(f"v_add_f32 v{160+k}, v{160+k}, v{192+k}")
    for k in range(32):
        A(f"v_add_f32 v{V_OWN+k}, v{V_OWN+k}, v{160+k}")
    for k in range(32):
        A(f"v_mul_f32 v{128+k}, s38, v{V_OWN+k}")
    for k in range(32):
        A(f"v_exp_f32 v{128+k}, v{128+k}")
    A("s_nop 0")
    for k in range(32):
        A(f"v_add_f32 v{128+k}, 1.0, v{128+k}")
    for k in range(32):
        A(f"v_rcp_f32 v{128+k}, v{128+k}")
    A("s_nop 0")
    for k in range(32):
        A(f"v_fma_f32 v{128+k}, s39, v{128+k}, v14")
    ST()
    A("s_lshr_b32 s34, s16, 1")
    A("s_cmp_lg_u32 s34, s43")
    A("s_cbranch_scc1 L_recv")
    for k in range(16):
        A(f"v_cvt_pk_bf16_f32 v{160+k}, v{128+2*k}, v{128+2*k+1}")
    A("s_lshl_b32 s34, s2, 2")
    A("s_add_u32 s34, s34, s16")
    A("s_lshl_b32 s34, s34, 13")
    for k in range(4):
        A(f"buffer_store_dwordx4 {vr(160+4*k,4)}, v12, s[48:51], s34 offen offset:{k*1024} sc0 sc1")
    A("v_mov_b32 v13, 4096")
    A("s_waitcnt vmcnt(0)")
    A("s_mov_b64 exec, 1")
    A(f"buffer_store_dwordx2 {vr(V_NONCE,2)}, v13, s[48:51], s34 offen sc0 sc1")
    A("s_mov_b64 exec, -1")
    A("s_branch L_fin")
    e.lab("L_recv")
    A("s_xor_b32 s34, s2, 8")
    A("s_lshl_b32 s34, s34, 2")
    A("s_add_u32 s34, s34, s16")
    A("s_lshl_b32 s34, s34, 13")
    A("v_mov_b32 v13, 4096")
    A("s_mov_b32 s35, 0")
    e.lab("L_poll")
    A(f"buffer_load_dwordx2 v[160:161], v13, s[48:51], s34 offen sc0 sc1")
    A("s_add_u32 s35, s35, 1")
    A("s_waitcnt vmcnt(0)")
    A(f"v_cmp_eq_u64 vcc, v[160:161], {vr(V_NONCE,2)}")
    A("s_cmp_gt_u32 s35, 0x40000")
    A("s_cbranch_scc1 L_got")
    A("s_cbranch_vccz L_poll")
    e.lab("L_got")
    for k in range(4):
        A(f"buffer_load_dwordx4 {vr(160+4*k,4)}, v12, s[48:51], s34 offen offset:{k*1024} sc0 sc1")
    A("v_bfe_u32 v14, v0, 1, 4")
    A("v_lshlrev_b32 v14, 3, v14")
    A("v_and_b32 v13, 1, v0")
    A("v_add_u32 v14, v14, v13")
    A("s_lshl_b32 s34, s16, 1")
    A("s_add_u32 s34, s34, s41")
    A("v_add_u32 v14, s34, v14")
    A("v_lshlrev_b32 v14, 10, v14")
    A("v_lshrrev_b32 v13, 5, v0")
    A("v_lshlrev_b32 v13, 3, v13")
    A("v_add_u32 v14, v14, v13")
    A("v_add_u32 v14, s45, v14")
    A("s_waitcnt vmcnt(0)")
    for k in range(16):
        A(f"v_lshlrev_b32 v{192+2*k}, 16, v{160+k}")
        A(f"v_and_b32 v{192+2*k+1}, 0xffff0000, v{160+k}")
    for k in range(32):
        A(f"v_mul_f32 v{128+k}, v{128+k}, v{192+k}")
    for k in range(16):
        A(f"v_cvt_pk_bf16_f32 v{160+k}, v{128+2*k}, v{128+2*k+1}")
    for nb in range(2):
        for g4 in range(4):
            A(f"buffer_store_dwordx2 {vr(160+(nb*4+g4)*2,2)}, v14, s[12:15], 0 offen offset:{nb*64+g4*16}")
    e.lab("L_fin")
    if stamp:
        A("s_waitcnt vmcnt(0)")
        ST()
        A("s_waitcnt lgkmcnt(0)")
        A("s_lshl_b32 s34, s2, 2"); A("s_add_u32 s34, s34, s16"); A("s_lshl_b32 s34, s34, 7")
        A("s_add_u32 s34, s34, 0x800000")
        A("v_mov_b32 v12, s34")
        for k in range(4): A(f"s_mov_b32 s{64+2*sc[0]+k}, s{84+k}")
        sc[0]+=2
        for k in range(2*sc[0]):
            A(f"v_mov_b32 v{128+k}, s{64+k}")
        A("v_cmp_eq_u32 vcc, 0, v0")
        A("s_and_saveexec_b64 s[90:91], vcc")
        for k in range(sc[0]):
            A(f"buffer_store_dwordx2 v[{128+2*k}:{129+2*k}], v12, s[48:51], 0 offen offset:{8*k}")
    e.lab("L_end")
    A("s_endpgm")
    e.L.append('.section .rodata,"a"')
    e.L.append(".p2align 6")
    e.L.append(f".amdhsa_kernel {NAME}")
    for x in ["next_free_vgpr 256","next_free_sgpr 96","accum_offset 256","group_segment_fixed_size 0","kernarg_size 40","user_sgpr_count 2","user_sgpr_kernarg_segment_ptr 1","system_sgpr_workgroup_id_x 1"]:
        e.L.append("  .amdhsa_"+x)
    e.L.append(".end_amdhsa_kernel")
    return "\n".join(e.L)+"\n"
if __name__=="__main__":
    import argparse
    ap=argparse.ArgumentParser()
    ap.add_argument("out",nargs="?",default="standalone__autoregressive_conv_wavernn__speech.s")
    ap.add_argument("--stamp",action="store_true")
    ap.add_argument("--nopf",action="store_true")
    ap.add_argument("--nocodepf",action="store_true")
    a=ap.parse_args()
    open(a.out,"w").write(gen(stamp=a.stamp,pf=not a.nopf,codepf=not a.nocodepf))
```
